```python
import torch

def _softmax(x, axis=-1):
    return torch.softmax(x, dim=axis)
def _gelu(x):
    return torch.nn.functional.gelu(x, approximate="tanh")
def _silu(x):
    return torch.nn.functional.silu(x)
def _sigmoid(x):
    return torch.sigmoid(x)
def _layernorm(x, axis=-1, eps=1e-5):
    m = x.mean(dim=axis, keepdim=True)
    v = x.var(dim=axis, keepdim=True, unbiased=False)
    return (x - m) / torch.sqrt(v + eps)
def _scatter_add(tgt, idx, src, axis=0):
    return tgt.clone().index_add_(axis, idx, src)
def _segment_sum(src, seg, n):
    out = torch.zeros((n,) + src.shape[1:], dtype=src.dtype)
    return out.index_add_(0, seg, src)
def _pad(x, pw):
    flat = tuple(v for pair in reversed(pw) for v in pair)
    return torch.nn.functional.pad(x, flat)

kernel_name = 'standalone__gqa_softmax__near_ridge'

def setup_inputs():

    _w = (lambda a: (lambda t: t.to(torch.bfloat16) if t.is_floating_point() else t)(torch.as_tensor(a)))
    B, Hq, Hkv, Sq, Sk, D = 8, 16, 8, 128, 2048, 256
    return {
        "q": _w((lambda *s: torch.randn(*s, dtype=torch.bfloat16) * 0.8)(B, Hq, Sq, D)),
        "k": _w((lambda *s: torch.randn(*s, dtype=torch.bfloat16) * 0.8)(B, Hkv, Sk, D)),
        "v": _w((lambda *s: torch.randn(*s, dtype=torch.bfloat16) * 0.05)(B, Hkv, Sk, D)),
    }

def reference(q, k, v):
    B, Hq, Sq, D = q.shape
    Hkv = k.shape[1]
    rep = Hq // Hkv
    k = (lambda x, n, axis: torch.repeat_interleave(x, n, dim=axis))(k, rep, axis=1)
    v = (lambda x, n, axis: torch.repeat_interleave(x, n, dim=axis))(v, rep, axis=1)
    scale = D ** -0.5
    scores = torch.einsum("bhqd,bhkd->bhqk", q, k) * scale
    p = _softmax(scores, axis=-1)
    return torch.einsum("bhqk,bhkd->bhqd", p, v)
```

```python
import re
TRANS = ("v_exp_f32","v_log_f32","v_rcp_f32","v_rsq_f32","v_sqrt_f32","v_sin_f32","v_cos_f32")
def regs(tok):
    tok = tok.strip().lstrip("-")
    m = re.fullmatch(r"([vas])(\d+)", tok)
    if m: return {(m.group(1), int(m.group(2)))}
    m = re.fullmatch(r"([vas])\[(\d+):(\d+)\]", tok)
    if m: return {(m.group(1), i) for i in range(int(m.group(2)), int(m.group(3))+1)}
    if tok in ("vcc","exec","m0","scc"): return {(tok,0)}
    return set()
class I:
    def __init__(s, text):
        s.text = text
        t = text.split(";")[0].strip()
        p = t.split(None, 1)
        s.op = p[0]
        ops = [x.strip() for x in p[1].split(",")] if len(p) > 1 else []
        if ops:
            last = ops[-1].split()
            ops[-1] = last[0]; s.mods = last[1:]
        else: s.mods = []
        s.ops = ops
        op = s.op
        s.w = set(); s.r = set(); s.cls = "other"; s.srcC=set(); s.states = 1
        if op == "s_nop": s.states = int(ops[0]) + 1; s.cls="nop"
        elif op.startswith("v_mfma"):
            s.cls = "mfma"; s.w = regs(ops[0]); s.rA = regs(ops[1]) | regs(ops[2]); s.srcC = regs(ops[3]); s.r = s.rA | s.srcC
        elif op.startswith("v_cmp"):
            s.cls = "valu"; s.w = regs(ops[0]); s.r = regs(ops[1]) | regs(ops[2])
        elif op.startswith("v_permlane"):
            s.cls = "perm"; s.w = regs(ops[0]) | regs(ops[1]); s.r = set(s.w)
        elif op.startswith("v_readfirstlane") or op.startswith("v_readlane"):
            s.cls = "rdlane"; s.w = regs(ops[0]); s.r = regs(ops[1])
        elif op.startswith("v_"):
            s.cls = "trans" if op.split("_e")[0] in TRANS or op in TRANS else "valu"
            s.w = regs(ops[0])
            for o in ops[1:]: s.r |= regs(o)
            if op.startswith("v_fmac"): s.r |= s.w
            if op.startswith("v_cndmask") and len(ops)==3: s.r |= {("vcc",0)}
        elif op.startswith("ds_read"):
            s.cls = "dsr"; s.w = regs(ops[0]); s.r = regs(ops[1])
        elif op.startswith("ds_write"):
            s.cls = "dsw";
            for o in ops: s.r |= regs(o)
        elif op.startswith("buffer_load") or op.startswith("global_load"):
            s.cls = "vld"
            if "lds" in s.mods:
                for o in ops: s.r |= regs(o)
                s.r |= {("m0",0)}; s.lds=True
            else:
                s.w = regs(ops[0])
                for o in ops[1:]: s.r |= regs(o)
        elif op.startswith("buffer_store") or op.startswith("global_store"):
            s.cls = "vst"
            for o in ops: s.r |= regs(o)
            s.data = regs(ops[0]) if op.startswith("buffer") else regs(ops[1])
            s.wide = op.endswith("x4") or op.endswith("x3")
        elif "atomic" in op and not op.startswith("s_"):
            s.cls = "vst"; s.wide=False; s.data=set()
            for o in ops: s.r |= regs(o)
        elif op.startswith("s_"):
            s.cls = "salu"
            if op.startswith("s_cmp") or op.startswith("s_cbranch") or op in ("s_barrier","s_waitcnt","s_branch","s_endpgm","s_sleep","s_setprio"):
                for o in ops: s.r |= regs(o)
            else:
                if ops: s.w = regs(ops[0])
                for o in ops[1:]: s.r |= regs(o)
def isvalu(i): return i.cls in ("valu","trans","perm","rdlane")
def check(lines, name=""):
    ins = [I(l) for l in lines if l.strip() and not l.strip().endswith(":") and not l.strip().startswith((";","."))]
    errs = []
    n = len(ins)
    for j, c in enumerate(ins):
        dist = 0
        for i in range(j-1, max(-1, j-24), -1):
            p = ins[i]
            need = 0; why = ""
            vw = {x for x in p.w if x[0] in "va"}
            if p.cls == "mfma":
                if c.cls == "mfma":
                    if p.w & c.rA: need, why = 12, "mfma D->A/B"
                    elif (p.w & c.srcC) and p.w != c.srcC: need, why = 10, "mfma D->partial C"
                elif isvalu(c) and (p.w & (c.r | c.w)): need, why = 12, "mfma D->valu"
                elif c.cls in ("vst","dsw","vld","dsr") and (p.w & (c.r|c.w)): need, why = 12, "mfma D->mem"
                if isvalu(c) and (p.srcC & c.w) and need < 7: need, why = 7, "mfma C WAR"
            if isvalu(p):
                if c.cls == "mfma" and (vw & c.r): need, why = max(need,2), "valu->mfma"
                if c.cls == "perm" and (vw & c.r): need, why = max(need,2), "valu->permlane"
                if c.cls == "rdlane" and (vw & c.r): need, why = max(need,1), "valu->readlane"
                if p.cls == "trans" and isvalu(c) and c.cls != "trans" and (vw & c.r): need, why = max(need,1), "trans->valu"
                if p.cls == "trans" and c.cls=="mfma" and (vw & c.r): need, why = max(need,2), "trans->mfma"
                sw = {x for x in p.w if x[0] in ("s","vcc")}
                if sw:
                    if c.cls in ("vld","vst") and (sw & c.r): need, why = max(need,5), "valu sgpr->vmem"
                    if isvalu(c) and (sw & c.r): need, why = max(need,2), "valu sgpr->valu const"
            if p.cls == "salu" and ("m0",0) in p.w and getattr(c,"lds",False): need, why = max(need,1), "m0->ldsdma"
            if p.cls == "vst" and p.wide and (p.data & c.w): need, why = max(need, 2 if isvalu(c) else 1), "store data WAR"
            if need > dist:
                errs.append(f"{name}: need {need} have {dist} ({why}): '{p.text.strip()}' -> '{c.text.strip()}'")
            dist += p.states
            if dist >= 20: break
    return errs
```

```python
import sys, struct
from hazard import check
KN = "standalone__gqa_softmax__near_ridge_kernel"
HDR = open("standalone__gqa_softmax__near_ridge.s.ref").read().split("; Override")[0]
def f2u(x): return struct.unpack("<I", struct.pack("<f", x))[0]

vKd = [1, 2]; vVd = 3; vKa = [4, 5, 6, 7]; vVa = [8, 9]
vM = 10; vL = 11; vTS = 12; vTmp = 13; vOld = 14; vQo = 15
vT = list(range(16, 24))
vP = [24, 32]
vF = 40; vX = 42
vS = [48, 64]
VF = 80
vKEEP = 144
aO = 0; aQ = 128; aK = 192
sK = 16; sV = 20; sQ = 24; sO = 28; sXO = 32; sXI = 36; sFL = 56
sWave = 40; sU = 41; sG = 42; sH = 43; sKH = 44; sKo = 45; sVo = 46; sA = 47; sW = 48; sCnt = 49; sC = 50; sThr = 51; sD = 52; sT = 53; sX = 54; sWl = 55
sSt = 60
FLAG_OFF = 0x10000
PAY_OFF = 0x100000
PAY_STRIDE = 0x10800
def rng(p, b, n): return f"{p}[{b}:{b+n-1}]"

def gen(path, pol_kv="nt", pol_q="nt", pol_o="", pol_x="sc1", stamps=False, thr=1024.0):
    L = []; e = L.append
    segs = {}
    pk = (" " + pol_kv) if pol_kv else ""
    pq = (" " + pol_q) if pol_q else ""
    po = (" " + pol_o) if pol_o else ""
    px = (" " + pol_x) if pol_x else ""
    nst = [0]
    def stamp():
        if stamps:
            e(f"s_memrealtime s[{sSt+2*nst[0]}:{sSt+2*nst[0]+1}]"); nst[0] += 1
    def dmaK(i): return f"buffer_load_dwordx4 v{vKd[i&1]}, {rng('s',sK,4)}, s{sKo} offen offset:{1024*i}{pk} lds"
    def dmaV(i): return f"buffer_load_dwordx4 v{vVd}, {rng('s',sV,4)}, s{sVo} offen offset:{1024*i}{pk} lds"
    def rdK(s): return f"ds_read_b128 {rng('a',aK+4*s,4)}, v{vKa[s&3]} offset:{16384+(s>>2)*4096}"
    def rdV(ks, db, u): return f"ds_read_b64_tr_b16 {rng('v',VF+4*(ks*8+db)+2*u,2)}, v{vVa[db&1]} offset:{(db>>1)*4096+ks*2048+u*1024}"
    def qk(p, s): return f"v_mfma_f32_32x32x16_bf16 {rng('v',vS[p],16)}, {rng('a',aK+4*s,4)}, {rng('a',aQ+4*s,4)}, " + ("0" if s == 0 else rng('v',vS[p],16))
    def pv(p, ks, db): return f"v_mfma_f32_32x32x16_bf16 {rng('a',aO+16*db,16)}, {rng('v',VF+4*(ks*8+db),4)}, {rng('v',vP[p]+4*ks,4)}, {rng('a',aO+16*db,16)}"
    def softmax_ops(p):
        S = vS[p]; ops = []
        f = lambda i: (f"v_fma_f32 v{vT[i%8]}, v{S+i}, s{sC}, -v{vM}", 1)
        x = lambda i: (f"v_exp_f32 v{vT[i%8]}, v{vT[i%8]}", 2)
        def a(i):
            if i == 0: return None
            if i == 1: return (f"v_add_f32 v{vTS}, v{vT[0]}, v{vT[1]}", 1)
            return (f"v_add_f32 v{vTS}, v{vTS}, v{vT[i%8]}", 1)
        c = lambda i: (f"v_cvt_pk_bf16_f32 v{vP[p]+i//2}, v{vT[(i-1)%8]}, v{vT[i%8]}", 1)
        for step in range(16 + 3):
            if step < 16: ops.append(f(step))
            if 0 <= step-1 < 16: ops.append(x(step-1))
            if 0 <= step-2 < 16:
                o = a(step-2)
                if o: ops.append(o)
            if 0 <= step-3 < 16 and (step-3) % 2 == 1: ops.append(c(step-3))
        return ops
    SPLIT_COST = 50
    def split_softmax(p):
        ops = softmax_ops(p); acc = 0; k = 0
        while acc + ops[k][1] <= SPLIT_COST: acc += ops[k][1]; k += 1
        return ops[:k], ops[k:]
    def place(mfmas, fixed, flow, first_flow_gap, last_flow_gap, budget=6):
        n = len(mfmas)
        room = [max(0, budget - sum(c for _, c in fixed.get(g, []))) if first_flow_gap <= g <= last_flow_gap else 0 for g in range(n)]
        tot = sum(c for _, c in flow); troom = sum(room)
        out = []; k = 0; cum = 0; used = 0
        for g in range(n):
            out.append(mfmas[g])
            cum += room[g]
            target = tot * cum / troom if troom else 0
            fl = []
            while k < len(flow) and (used + flow[k][1] / 2 <= target or g == last_flow_gap):
                fl.append(flow[k]); used += flow[k][1]; k += 1
            fx = list(fixed.get(g, []))
            mix = []
            while fx or fl:
                if fx: mix.append(fx.pop(0))
                if fl: mix.append(fl.pop(0))
            out += [t for t, _ in mix]
        assert k == len(flow)
        return out
    def ring_update():
        return [(f"s_mov_b32 s{sW}, s{sA}", 1), (f"s_add_u32 s{sA}, s{sA}, 0x8000", 1), (f"s_sub_u32 s{sT}, s{sA}, 0x28000", 1),
                (f"s_cmp_lt_u32 s{sA}, 0x28000", 1), (f"s_cselect_b32 s{sA}, s{sA}, s{sT}", 1), (f"s_sub_u32 s{sD}, s{sA}, s{sW}", 1)]
    def phaseA(t, tag):
        p = t & 1
        mf = [qk(p ^ 1, s) for s in range(16)]
        fixed = {g: [] for g in range(16)}
        fixed[0] += [("s_waitcnt vmcnt(24)", 1), ("s_barrier", 1), (f"s_mov_b32 m0, s{sW}", 1)]
        reads = [rdV(ks, db, u) for ks in range(2) for db in range(8) for u in range(2)]
        cnt = [2, 3, 3, 2, 3, 3, 2, 3, 3, 2, 3, 3, 0, 0, 0, 0]
        k = 0
        for g in range(16):
            for _ in range(cnt[g]): fixed[g].append((reads[k], 1)); k += 1
        assert k == 32
        for i, g in enumerate((0, 3, 6, 9)): fixed[g].append((dmaV(i), 2))
        fixed[10].append((f"s_add_u32 s{sVo}, s{sVo}, 0x4000", 1))
        for q in range(4): fixed[12 + (q >> 1)].append((f"v_add_u32 v{vKa[q]}, s{sD}, v{vKa[q]}", 1))
        _, part2 = split_softmax(p)
        fixed[14] += [(f"v_cmp_lt_f32 vcc, s{sThr}, v{vTS}", 1), (f"s_cbranch_vccnz L_rare_{tag}", 1), (f"L_back_{tag}:", 0), (f"v_add_f32 v{vL}, v{vL}, v{vTS}", 1)]
        fixed[15] += [(f"s_add_u32 m0, s{sW}, 0x4000", 1), ("s_waitcnt lgkmcnt(0)", 1)]
        return place(mf, fixed, part2, 1, 13)
    def phaseB(t, last=False):
        p = t & 1
        mf = [pv(p, ks, db) for ks in range(2) for db in range(8)]
        fixed = {g: [] for g in range(16)}
        cnt = [3, 3, 1, 1, 1, 1, 1, 1, 1, 1, 1, 1, 0, 0, 0, 0]
        k = 0
        for g in range(16):
            for _ in range(cnt[g]): fixed[g].append((rdK(k), 1)); k += 1
        assert k == 16
        for i, g in enumerate((0, 4, 8, 12)): fixed[g].append((dmaK(i), 2))
        fixed[13].append((f"s_add_u32 s{sKo}, s{sKo}, 0x4000", 1))
        ru = ring_update()
        fixed[1] += ru[:3]; fixed[13] += ru[3:5]; fixed[14] += ru[5:]
        fixed[15] += [(f"v_add_u32 v{vVa[0]}, s{sD}, v{vVa[0]}", 1), (f"v_add_u32 v{vVa[1]}, s{sD}, v{vVa[1]}", 1)]
        part1, _ = split_softmax(p ^ 1)
        out = place(mf, fixed, part1, 2, 15)
        return out
    def rare(p, tag):
        S = vS[p]; r = []
        r.append(f"L_rare_{tag}:")
        r.append(f"v_max3_f32 v{vTmp}, v{S}, v{S+1}, v{S+2}")
        for i in range(3, 15, 2): r.append(f"v_max3_f32 v{vTmp}, v{vTmp}, v{S+i}, v{S+i+1}")
        r.append(f"v_max_f32 v{vTmp}, v{vTmp}, v{S+15}")
        r.append(f"v_mov_b32 v{vT[0]}, v{vTmp}"); r.append("s_nop 1")
        r.append(f"v_permlane32_swap_b32 v{vT[0]}, v{vTmp}")
        r.append(f"v_max_f32 v{vTmp}, v{vTmp}, v{vT[0]}")
        r.append(f"v_mul_f32 v{vTmp}, s{sC}, v{vTmp}")
        r.append(f"v_max_f32 v{vTmp}, v{vTmp}, v{vM}")
        r.append(f"v_sub_f32 v{vT[0]}, v{vM}, v{vTmp}")
        r.append(f"v_exp_f32 v{vT[0]}, v{vT[0]}")
        r.append(f"v_mov_b32 v{vM}, v{vTmp}")
        r.append(f"v_mul_f32 v{vL}, v{vL}, v{vT[0]}")
        r.append("s_nop 7"); r.append("s_nop 7")
        for b in range(0, 128, 4):
            for i in range(4): r.append(f"v_accvgpr_read_b32 v{vT[1+i]}, a{aO+b+i}")
            for i in range(4): r.append(f"v_mul_f32 v{vT[1+i]}, v{vT[1+i]}, v{vT[0]}")
            for i in range(4): r.append(f"v_accvgpr_write_b32 a{aO+b+i}, v{vT[1+i]}")
        r += [t for t, _ in softmax_ops(p)]
        r.append("s_nop 1")
        r.append(f"s_branch L_back_{tag}")
        return r

    e(HDR.rstrip())
    e("; @launch grid=(256,1,1) block=(256,1,1) lds=163840")
    e('.amdgcn_target "amdgcn-amd-amdhsa--gfx950"'); e(".text"); e(f".globl {KN}"); e(".p2align 8"); e(f".type {KN},@function"); e(f"{KN}:")
    body0 = len(L)
    e("s_cmp_ge_u32 s2, 256"); e("s_cbranch_scc1 L_end")
    e("s_load_dwordx8 s[4:11], s[0:1], 0"); e("s_load_dwordx4 s[12:15], s[0:1], 32")
    stamp()
    e(f"v_lshrrev_b32 v{vTmp}, 6, v0"); e("v_and_b32 v0, 63, v0"); e(f"v_readfirstlane_b32 s{sWave}, v{vTmp}")
    e(f"s_and_b32 s{sU}, s2, 7"); e(f"s_lshl_b32 s{sU}, s{sU}, 5"); e(f"s_lshr_b32 s{sG}, s2, 3"); e(f"s_add_u32 s{sU}, s{sU}, s{sG}")
    e(f"s_lshr_b32 s{sG}, s{sU}, 2"); e(f"s_and_b32 s{sH}, s{sU}, 1"); e(f"s_bfe_u32 s{sKH}, s{sU}, 0x10001")
    e("v_lshrrev_b32 v16, 3, v0"); e("v_lshrrev_b32 v17, 4, v0"); e("v_and_b32 v18, 1, v16"); e("v_lshlrev_b32 v18, 9, v18")
    e("v_lshl_add_u32 v18, v17, 12, v18"); e("v_and_b32 v19, 7, v0"); e("v_xor_b32 v20, v19, v17")
    e(f"v_lshl_add_u32 v{vKd[0]}, v20, 4, v18"); e(f"v_xor_b32 v{vKd[1]}, 64, v{vKd[0]}")
    e("v_and_b32 v20, 1, v17"); e("v_lshlrev_b32 v20, 2, v20"); e("v_xor_b32 v20, v19, v20"); e(f"v_lshl_add_u32 v{vVd}, v20, 4, v18")
    e("v_and_b32 v21, 31, v0"); e("v_lshrrev_b32 v22, 5, v0"); e(f"v_lshlrev_b32 v{vQo}, 9, v21"); e(f"v_lshl_add_u32 v{vQo}, v22, 4, v{vQo}")
    e(f"v_lshlrev_b32 v{vF}, 7, v0")
    e(f"s_lshl_b32 s{sT}, s{sG}, 20"); e(f"s_lshl_b32 s{sD}, s{sKH}, 19"); e(f"s_add_u32 s{sT}, s{sT}, s{sD}")
    e(f"s_mov_b32 s{sK+2}, 0x80000"); e(f"s_mov_b32 s{sK+3}, 0x20000"); e(f"s_mov_b32 s{sV+2}, 0x80000"); e(f"s_mov_b32 s{sV+3}, 0x20000")
    e(f"s_mov_b32 s{sQ+2}, 0x10000"); e(f"s_mov_b32 s{sQ+3}, 0x20000"); e(f"s_mov_b32 s{sFL+2}, 512"); e(f"s_mov_b32 s{sFL+3}, 0x20000")
    e(f"s_lshl_b32 s{sKo}, s{sWave}, 7")
    e(f"s_xor_b32 s{sVo}, s{sKH}, 1"); e(f"s_lshl_b32 s{sVo}, s{sVo}, 8"); e(f"s_xor_b32 s{sVo}, s{sVo}, s{sKo}")
    e(f"s_lshl_b32 s{sWl}, s{sWave}, 12")
    e(f"s_lshl_b32 s{sD}, s{sG}, 1"); e(f"s_add_u32 s{sD}, s{sD}, s{sH}"); e(f"s_lshl_b32 s{sD}, s{sD}, 16")
    e(f"s_lshl_b32 s{sX}, s{sG}, 9"); e(f"s_add_u32 s{sX}, s{sX}, {FLAG_OFF}")
    e(f"s_lshl_b32 s{sCnt}, s{sWave}, 14")
    e(f"s_add_u32 m0, s{sWl}, {3*32768+16384}")
    e("s_waitcnt lgkmcnt(0)")
    e(f"s_add_u32 s{sK}, s6, s{sT}"); e(f"s_addc_u32 s{sK+1}, s7, 0")
    e(f"s_add_u32 s{sFL}, s14, s{sX}"); e(f"s_addc_u32 s{sFL+1}, s15, 0")
    e(f"s_cmp_lg_u32 s{sWave}, 0"); e("s_cbranch_scc1 L_noflag0")
    e(f"buffer_load_dword v{vF}, v{vF}, {rng('s',sFL,4)}, 0 offen sc1")
    e("L_noflag0:")
    for i in range(4): e(dmaK(i))
    e(f"s_add_u32 s{sQ}, s4, s{sD}"); e(f"s_addc_u32 s{sQ+1}, s5, 0")
    e(f"s_add_u32 s{sKo}, s{sKo}, 0x4000")
    for s in range(16): e(f"buffer_load_dwordx4 {rng('a',aQ+4*s,4)}, v{vQo}, {rng('s',sQ,4)}, s{sCnt} offen offset:{32*s}{pq}")
    e(f"s_add_u32 s{sV}, s8, s{sT}"); e(f"s_addc_u32 s{sV+1}, s9, 0")
    def pro_unit(kind, ldsoff):
        e(f"s_add_u32 m0, s{sWl}, {ldsoff}"); e("s_nop 0")
        for i in range(4): e(dmaK(i) if kind == "K" else dmaV(i))
        r = sKo if kind == "K" else sVo
        e(f"s_add_u32 s{r}, s{r}, 0x4000")
    pro_unit("K", 4*32768+16384)
    for j in range(3):
        pro_unit("V", j*32768); pro_unit("K", j*32768+16384)
    pro_unit("V", 3*32768)
    stamp()
    e(f"s_add_u32 s{sO}, s10, s{sD}"); e(f"s_addc_u32 s{sO+1}, s11, 0"); e(f"s_mov_b32 s{sO+2}, 0x10000"); e(f"s_mov_b32 s{sO+3}, 0x20000")
    e(f"s_mul_i32 s{sT}, s{sU}, {PAY_STRIDE}"); e(f"s_add_u32 s{sT}, s{sT}, {PAY_OFF}")
    e(f"s_add_u32 s{sXO}, s14, s{sT}"); e(f"s_addc_u32 s{sXO+1}, s15, 0"); e(f"s_mov_b32 s{sXO+2}, {PAY_STRIDE}"); e(f"s_mov_b32 s{sXO+3}, 0x20000")
    e(f"s_xor_b32 s{sT}, s{sU}, 2"); e(f"s_mul_i32 s{sT}, s{sT}, {PAY_STRIDE}"); e(f"s_add_u32 s{sT}, s{sT}, {PAY_OFF}")
    e(f"s_add_u32 s{sXI}, s14, s{sT}"); e(f"s_addc_u32 s{sXI+1}, s15, 0"); e(f"s_mov_b32 s{sXI+2}, {PAY_STRIDE}"); e(f"s_mov_b32 s{sXI+3}, 0x20000")
    e(f"s_mov_b32 s{sC}, {f2u(1.4426950408889634/16.0):#x}"); e(f"s_mov_b32 s{sThr}, {f2u(thr):#x}")
    e(f"s_add_u32 s{sA}, s{sWl}, {4*32768}")
    e("v_bfe_u32 v16, v21, 1, 3"); e("v_xor_b32 v16, v16, v22"); e("v_lshlrev_b32 v16, 4, v16"); e("v_lshl_add_u32 v16, v21, 7, v16")
    e(f"v_add_u32 v{vKa[0]}, {3*32768}, v16")
    for q in range(1, 4): e(f"v_xor_b32 v{vKa[q]}, {q*32}, v{vKa[0]}")
    e("v_bfe_u32 v16, v0, 2, 2")
    e("v_lshl_add_u32 v17, v22, 2, v16")
    e("v_bfe_u32 v18, v0, 4, 1"); e("v_lshlrev_b32 v18, 1, v18")
    e("v_bfe_u32 v19, v0, 1, 1"); e("v_add_u32 v18, v18, v19")
    e("v_lshrrev_b32 v16, 1, v16"); e("v_lshlrev_b32 v16, 2, v16"); e("v_xor_b32 v18, v18, v16")
    e("v_lshlrev_b32 v18, 4, v18"); e("v_lshl_add_u32 v18, v17, 7, v18")
    e("v_and_b32 v19, 1, v0"); e(f"v_lshl_add_u32 v{vVa[0]}, v19, 3, v18"); e(f"v_xor_b32 v{vVa[1]}, 64, v{vVa[0]}")
    for i in range(128): e(f"v_accvgpr_write_b32 a{aO+i}, 0")
    e(f"v_mov_b32 v{vL}, 0")
    e("s_waitcnt vmcnt(32)"); e("s_barrier")
    stamp()
    for s in range(16): e(rdK(s))
    e(f"s_cmp_lg_u32 s{sWave}, 0"); e("s_cbranch_scc1 L_noflag1")
    e(f"s_mov_b32 s{sX}, 0")
    e("L_prop:"); e(f"s_add_u32 s{sX}, s{sX}, 1"); e(f"v_cmp_eq_u32 vcc, s{sX}, v{vF}"); e("s_cbranch_vccnz L_prop")
    e(f"v_mov_b32 v{vX}, s{sX}"); e(f"v_mov_b32 v{vX+1}, 0"); e(f"s_lshl_b32 s{sT}, s{sG}, 2"); e(f"v_mov_b32 v{vF}, s{sT}")
    e("s_mov_b64 exec, 1")
    e(f"global_atomic_cmpswap v{vOld}, v{vF}, {rng('v',vX,2)}, s[12:13] sc0")
    e("s_mov_b64 exec, -1")
    e("L_noflag1:")
    for q in range(4): e(f"v_add_u32 v{vKa[q]}, 0x8000, v{vKa[q]}")
    e("s_waitcnt lgkmcnt(0)")
    for s in range(2): e(qk(0, s))
    e("s_waitcnt vmcnt(28)"); e("s_barrier")
    e(f"s_add_u32 m0, s{sWl}, {3*32768+16384}")
    for s in range(2, 16):
        e(qk(0, s))
        e(rdK(s - 2))
        if s - 2 < 4: e(dmaK(s - 2))
    e(rdK(14)); e(rdK(15))
    e(f"s_add_u32 s{sKo}, s{sKo}, 0x4000")
    for t, _ in ring_update(): e(t)
    e("s_nop 3")
    S = vS[0]
    e(f"v_max3_f32 v{vM}, v{S}, v{S+1}, v{S+2}")
    for i in range(3, 15, 2): e(f"v_max3_f32 v{vM}, v{vM}, v{S+i}, v{S+i+1}")
    e(f"v_max_f32 v{vM}, v{vM}, v{S+15}")
    e(f"v_mov_b32 v{vTmp}, v{vM}"); e("s_nop 1"); e(f"v_permlane32_swap_b32 v{vTmp}, v{vM}")
    e(f"v_max_f32 v{vM}, v{vM}, v{vTmp}"); e(f"v_mul_f32 v{vM}, s{sC}, v{vM}")
    part1, _ = split_softmax(0)
    for t, _ in part1: e(t)
    e(f"s_mov_b32 s{sCnt}, 16")
    e("s_waitcnt lgkmcnt(0)")
    stamp()
    pro_end = len(L)
    e("L_loop:")
    loop0 = len(L)
    L += phaseA(0, "e"); L += phaseB(0); e("s_waitcnt lgkmcnt(0)")
    L += phaseA(1, "o"); L += phaseB(1)
    e(f"s_sub_u32 s{sCnt}, s{sCnt}, 1"); e(f"s_cmp_lg_u32 s{sCnt}, 0"); e("s_waitcnt lgkmcnt(0)"); e("s_cbranch_scc1 L_loop")
    loop1 = len(L)
    stamp()
    e(f"v_mov_b32 v{vTmp}, v{vL}"); e(f"v_lshlrev_b32 v16, 4, v0"); e(f"v_lshlrev_b32 v17, 3, v0")
    e(f"v_permlane32_swap_b32 v{vTmp}, v{vL}")
    e(f"s_lshl_b32 s{sT}, s{sWave}, 14"); e(f"s_lshl_b32 s{sD}, s{sWave}, 9"); e(f"s_add_u32 s{sD}, s{sD}, 0x10000")
    e(f"v_add_f32 v{vL}, v{vL}, v{vTmp}")
    e("s_nop 7")
    e(f"buffer_store_dwordx2 {rng('v',vM,2)}, v17, {rng('s',sXO,4)}, s{sD} offen{px}")
    for i in range(16):
        e(f"buffer_store_dwordx4 {rng('a',aO+4*i,4)}, v16, {rng('s',sXO,4)}, s{sT} offen offset:{(i&3)*1024}{px}")
        if i & 3 == 3: e(f"s_add_u32 s{sT}, s{sT}, 0x1000")
    for i in range(64): e(f"v_accvgpr_read_b32 v{vKEEP+i}, a{aO+64+i}")
    e(f"s_sub_u32 s{sT}, s{sT}, 0x4000")
    e("s_waitcnt vmcnt(0)"); e("s_barrier")
    stamp()
    e(f"s_cmp_lg_u32 s{sWave}, 0"); e("s_cbranch_scc1 L_nopoll")
    e(f"v_readfirstlane_b32 s{sW}, v{vOld}")
    e(f"s_and_b32 s{sA}, s{sU}, 3"); e(f"s_lshl_b32 s{sA}, s{sA}, 7")
    e(f"s_cmp_eq_u32 s{sW}, 0"); e(f"s_cselect_b32 s{sX}, s{sX}, s{sW}")
    e(f"v_mov_b32 v{vF}, s{sA}"); e(f"v_mov_b32 v{vX}, s{sX}")
    e(f"buffer_store_dword v{vX}, v{vF}, {rng('s',sFL,4)}, 0 offen sc1")
    e(f"v_xor_b32 v{vF}, 256, v{vF}")
    e(f"s_mov_b32 s{sCnt}, 0x400000")
    e("L_poll:")
    e(f"buffer_load_dword v{vX+1}, v{vF}, {rng('s',sFL,4)}, 0 offen sc1")
    e(f"s_sub_u32 s{sCnt}, s{sCnt}, 1"); e("s_cbranch_scc1 L_nopoll")
    e("s_waitcnt vmcnt(0)")
    e(f"v_cmp_ne_u32 vcc, s{sX}, v{vX+1}")
    e("s_cbranch_vccnz L_poll")
    e("L_nopoll:")
    e("s_barrier")
    stamp()
    e(f"buffer_load_dwordx2 v[18:19], v17, {rng('s',sXI,4)}, s{sD} offen{px}")
    for i in range(16):
        e(f"buffer_load_dwordx4 {rng('v',VF+4*i,4)}, v16, {rng('s',sXI,4)}, s{sT} offen offset:{(i&3)*1024}{px}")
        if i & 3 == 3: e(f"s_add_u32 s{sT}, s{sT}, 0x1000")
    e(f"s_lshl_b32 s{sT}, s{sWave}, 14"); e(f"s_lshl_b32 s{sD}, s{sKH}, 8"); e(f"s_add_u32 s{sT}, s{sT}, s{sD}")
    e("s_waitcnt vmcnt(16)")
    e(f"v_max_f32 v20, v{vM}, v18"); e(f"v_sub_f32 v21, v{vM}, v20"); e("v_sub_f32 v22, v18, v20")
    e("v_exp_f32 v21, v21"); e("v_exp_f32 v22, v22"); e("s_nop 0")
    e(f"v_mul_f32 v20, v21, v{vL}"); e("v_fmac_f32 v20, v22, v19"); e("v_rcp_f32 v20, v20"); e("s_nop 0")
    e("v_mul_f32 v21, v21, v20"); e("v_mul_f32 v22, v22, v20")
    for i in range(64): e(f"v_mul_f32 v{vKEEP+i}, v{vKEEP+i}, v21")
    for db in range(4):
        e(f"s_waitcnt vmcnt({12-4*db+(2*db)})")
        for i in range(16): e(f"v_fmac_f32 v{vKEEP+16*db+i}, v{VF+16*db+i}, v22")
        for pr in range(2):
            b = vKEEP + 16*db + 8*pr; d = 24 + 8*(db & 1) + 4*pr
            for k in range(4): e(f"v_cvt_pk_bf16_f32 v{d+k}, v{b+2*k}, v{b+2*k+1}")
            e("s_nop 1")
            e(f"v_permlane32_swap_b32 v{d}, v{d+2}"); e(f"v_permlane32_swap_b32 v{d+1}, v{d+3}")
            e(f"buffer_store_dwordx4 {rng('v',d,4)}, v{vQo}, {rng('s',sO,4)}, s{sT} offen offset:{db*64+pr*32}{po}")
    if stamps:
        stamp()
        e("s_waitcnt vmcnt(0)")
        stamp()
        e("s_waitcnt lgkmcnt(0)")
        e(f"s_cmp_lg_u32 s{sWave}, 0"); e("s_cbranch_scc1 L_end")
        e(f"s_mul_i32 s{sT}, s2, {8*nst[0]}"); e(f"v_mov_b32 v16, s{sT}")
        for i in range(nst[0]):
            e(f"v_mov_b32 v18, s{sSt+2*i}"); e(f"v_mov_b32 v19, s{sSt+2*i+1}")
            e(f"global_store_dwordx2 v16, v[18:19], s[14:15] offset:{8*i}")
    e("L_end:"); e("s_endpgm")
    main_end = len(L)
    re_ = rare(0, "e"); ro_ = rare(1, "o")
    L += re_; L += ro_
    e('.section .rodata,"a"'); e(".p2align 6"); e(f".amdhsa_kernel {KN}")
    e("  .amdhsa_next_free_vgpr 512"); e("  .amdhsa_next_free_sgpr 102"); e("  .amdhsa_accum_offset 256")
    e("  .amdhsa_group_segment_fixed_size 0"); e("  .amdhsa_kernarg_size 48"); e("  .amdhsa_user_sgpr_count 2")
    e("  .amdhsa_user_sgpr_kernarg_segment_ptr 1"); e("  .amdhsa_system_sgpr_workgroup_id_x 1"); e(".end_amdhsa_kernel")
    loop = L[loop0:loop1]
    errs = check(L[body0:loop1] + loop + L[loop1:main_end], "main")
    for tag, r in (("e", re_), ("o", ro_)):
        k = loop.index(f"L_back_{tag}:")
        errs += check(loop + loop[:k] + r + loop[k:], "rare" + tag)
    for x in sorted(set(errs)): print("HAZARD", x)
    open(path, "w").write("\n".join(L) + "\n")
    return nst[0]

if __name__ == "__main__":
    from build import build
    import argparse
    ap = argparse.ArgumentParser(); ap.add_argument("out"); ap.add_argument("--opt", action="append", default=[])
    a = ap.parse_args()
    kw = {}
    for o in a.opt:
        k, v = o.split("=", 1)
        kw[k] = {"True": True, "False": False}.get(v, v)
        if k == "thr": kw[k] = float(v)
    n = gen(a.out, **kw); build(a.out); print("ok", a.out, "stamps", n)
```
